```python
import torch

def _softmax(x, axis=-1):
    return torch.softmax(x, dim=axis)
def _gelu(x):
    return torch.nn.functional.gelu(x, approximate="tanh")
def _silu(x):
    return torch.nn.functional.silu(x)
def _sigmoid(x):
    return torch.sigmoid(x)
def _layernorm(x, axis=-1, eps=1e-5):
    m = x.mean(dim=axis, keepdim=True)
    v = x.var(dim=axis, keepdim=True, unbiased=False)
    return (x - m) / torch.sqrt(v + eps)
def _scatter_add(tgt, idx, src, axis=0):
    return tgt.clone().index_add_(axis, idx, src)
def _segment_sum(src, seg, n):
    out = torch.zeros((n,) + src.shape[1:], dtype=src.dtype)
    return out.index_add_(0, seg, src)
def _pad(x, pw):
    flat = tuple(v for pair in reversed(pw) for v in pair)
    return torch.nn.functional.pad(x, flat)

kernel_name = 'standalone__mha_block_cached__near_ridge'

def setup_inputs():

    _w = (lambda a: (lambda t: t.to(torch.bfloat16) if t.is_floating_point() else t)(torch.as_tensor(a)))
    B, Sq, D = 16, 192, 576
    H, Sk, Dh = 32, 1024, 128
    return {
        "x": _w((lambda *s: torch.randn(*s, dtype=torch.bfloat16) * 0.8)(B, Sq, D)),
        "k_cache": _w((lambda *s: torch.randn(*s, dtype=torch.bfloat16) * 0.8)(B, H, Sk, Dh)),
        "v_cache": _w((lambda *s: torch.randn(*s, dtype=torch.bfloat16) * 0.05)(B, H, Sk, Dh)),
        "wq": _w((lambda *s: torch.randn(*s, dtype=torch.bfloat16) * 0.8)(D, H * Dh) * (D ** -0.5)),
        "wo": _w((lambda *s: torch.randn(*s, dtype=torch.bfloat16) * 0.05)(H * Dh, D) * ((H * Dh) ** -0.5)),
    }

def reference(x, k_cache, v_cache, wq, wo):
    B, Sq, D = x.shape
    H, Dh = 32, 128
    q = (lambda x, *d: x.permute(*d))((x @ wq).reshape(B, Sq, H, Dh), 0, 2, 1, 3)
    scores = torch.einsum("bhqd,bhkd->bhqk", q, k_cache) * (Dh ** -0.5)
    p = _softmax(scores, axis=-1)
    o = torch.einsum("bhqk,bhkd->bhqd", p, v_cache)
    return (lambda x, *d: x.permute(*d))(o, 0, 2, 1, 3).reshape(B, Sq, H * Dh) @ wo
```

```python
import re

TRANS = ("v_exp_f32", "v_log_f32", "v_rcp_f32", "v_rsq_f32", "v_sqrt_f32")
_reg = re.compile(r"^(-|abs\()?([vas])(\d+|\[(\d+):(\d+)\])\)?$")

def regs(tok):
    tok = tok.strip()
    if tok == "vcc": return {("s", 106), ("s", 107)}
    if tok == "m0": return {("s", 124)}
    if tok == "exec": return {("s", 126), ("s", 127)}
    m = _reg.match(tok)
    if not m: return set()
    f = m.group(2)
    if m.group(4) is not None:
        return {(f, i) for i in range(int(m.group(4)), int(m.group(5)) + 1)}
    return {(f, int(m.group(3)))}

class I:
    def __init__(s, text):
        s.text = text
        t = text.split(";")[0].strip()
        s.label = t.endswith(":") or t.startswith(".") or t == ""
        s.mn = t.split()[0] if t else ""
        ops = t[len(s.mn):].strip()
        toks = [x.strip() for x in ops.split(",")] if ops else []
        if toks:
            last = toks[-1].split()
            toks[-1] = last[0] if last else ""
            s.mods = last[1:]
        else:
            s.mods = []
        s.toks = toks
        mn = s.mn
        s.kind = "other"; s.rd = set(); s.wr = set(); s.A = s.B = s.C = set(); s.states = 1
        R = lambda i: regs(toks[i]) if i < len(toks) else set()
        allr = lambda a: set().union(*[regs(x) for x in toks[a:]]) if len(toks) > a else set()
        if s.label: s.kind = "label"; s.states = 0
        elif mn.startswith("v_mfma"):
            s.kind = "mfma"; s.wr = R(0); s.A = R(1); s.B = R(2); s.C = R(3); s.rd = s.A | s.B | s.C
            s.passes = 4 if "16x16x32" in mn else 8
        elif mn.startswith("v_"):
            s.kind = "valu"; s.wr = R(0); s.rd = allr(1)
            if mn.startswith("v_permlane") and "swap" in mn: s.wr = R(0) | R(1); s.rd = R(0) | R(1)
            if mn.startswith(("v_fmac", "v_dot2c")): s.rd |= R(0)
            if mn.startswith(("v_add_co", "v_addc_co", "v_sub_co")): s.wr |= R(1); s.rd = allr(2)
            if mn.startswith("v_cndmask") and len(toks) == 3: s.rd |= regs("vcc")
        elif mn.startswith("ds_read"):
            s.kind = "ds"; s.wr = R(0); s.rd = R(1)
        elif mn.startswith("ds_write"):
            s.kind = "ds"; s.rd = allr(0)
        elif mn.startswith(("buffer_load", "global_load")):
            s.kind = "vmem"
            if "lds" in s.mods or "_lds_" in mn: s.rd = allr(0) | regs("m0"); s.dma = True
            else: s.wr = R(0); s.rd = allr(1)
        elif mn.startswith(("buffer_store", "global_store", "buffer_atomic", "global_atomic")):
            s.kind = "vmem"; s.rd = allr(0); s.store = True
        elif mn == "s_nop":
            s.kind = "salu"; s.states = int(toks[0], 0) + 1
        elif mn.startswith("s_"):
            s.kind = "salu"
            if mn.startswith(("s_cmp", "s_cbranch", "s_branch", "s_waitcnt", "s_barrier", "s_endpgm", "s_setprio", "s_sleep")): s.rd = allr(0)
            else: s.wr = R(0); s.rd = allr(1)

def need(p, c):
    n = 0
    vg = lambda S: {r for r in S if r[0] in "va"}
    sg = lambda S: {r for r in S if r[0] == "s"}
    if p.kind == "mfma":
        big = 8 if p.passes == 4 else 12
        if c.kind == "mfma":
            if p.wr & (c.A | c.B): n = max(n, big)
            if p.wr & c.C and not (p.wr == c.C and p.passes == c.passes): n = max(n, big - 2)
            if p.wr & c.wr and not (p.wr == c.C and p.wr == c.wr): n = max(n, big - 2)
        elif c.kind in ("valu", "ds", "vmem"):
            if p.wr & (c.rd | c.wr): n = max(n, big)
            if c.kind == "valu" and p.C & c.wr: n = max(n, 3 if p.passes == 4 else 7)
    elif p.kind == "valu":
        if c.kind == "mfma" and vg(p.wr) & c.rd: n = max(n, 2)
        if c.kind == "valu":
            if p.mn.startswith(TRANS) and not c.mn.startswith(TRANS) and p.wr & c.rd: n = max(n, 1)
            if p.mn.startswith(TRANS) and p.wr & c.rd: n = max(n, 1)
            if c.mn.startswith("v_permlane") and vg(p.wr) & c.rd: n = max(n, 2)
            if c.mn.startswith(("v_readfirstlane", "v_readlane")) and vg(p.wr) & c.rd: n = max(n, 1)
            if sg(p.wr) & c.rd: n = max(n, 2)
            if "dpp" in c.text or "row_" in c.text:
                if vg(p.wr) & c.rd: n = max(n, 2)
        if c.kind == "vmem" and sg(p.wr) & c.rd: n = max(n, 5)
        if c.kind == "salu" and sg(p.wr) & c.rd: n = max(n, 1)
    elif p.kind == "salu":
        if ("s", 124) in p.wr and c.kind == "vmem" and getattr(c, "dma", False): n = max(n, 1)
    elif p.kind == "vmem" and getattr(p, "store", False):
        if ("x4" in p.mn or "x3" in p.mn) and c.kind in ("valu", "ds", "vmem", "mfma") and vg(p.rd) & c.wr: n = max(n, 2)
    return n

class Asm:
    def __init__(s):
        s.L = []
        s.autonop = True
        s.nops = 0
    def e(s, text):
        ins = I(text)
        if s.autonop and ins.kind not in ("label", "other"):
            dist = 0; add = 0
            for p in reversed(s.L):
                if dist >= 20: break
                if p.kind == "label" and getattr(p, "barrier_hz", False): break
                n = need(p, ins)
                if n > dist: add = max(add, n - dist)
                dist += p.states
            if add:
                s.L.append(I(f"s_nop {add-1}")); s.nops += 1
        s.L.append(ins)
    def label(s, name, fresh=False):
        i = I(name + ":"); i.barrier_hz = fresh; s.L.append(i)
    def raw(s, text):
        i = I(""); i.text = text; s.L.append(i)
    def pos(s): return len(s.L)
    def check_loop(s, start, end):
        body = s.L[start:end]
        seq = body[-40:] + body[:40]
        k = len(body[-40:])
        for ci in range(k, len(seq)):
            c = seq[ci]; dist = 0
            for pi in range(ci - 1, -1, -1):
                p = seq[pi]
                if pi < k and need(p, c) > dist:
                    raise Exception(f"loop hazard: {p.text} -> {c.text} need {need(p,c)} have {dist}")
                dist += p.states
    def text(s):
        out = []
        for i in s.L:
            out.append(i.text if (i.kind == "label" or i.text.startswith((".", ";"))) else "    " + i.text)
        return "\n".join(out) + "\n"

def v(a, n=1): return f"v{a}" if n == 1 else f"v[{a}:{a+n-1}]"
def a(x, n=1): return f"a{x}" if n == 1 else f"a[{x}:{x+n-1}]"
def sr(x, n=1): return f"s{x}" if n == 1 else f"s[{x}:{x+n-1}]"

class Gaps:
    def __init__(s):
        s.m = []; s.sal = []; s.mem = []; s.val = []
    def add(s, mf):
        s.m.append(mf); s.sal.append([]); s.mem.append([]); s.val.append([]); return len(s.m) - 1
    def emit(s, A):
        for i, mf in enumerate(s.m):
            if mf: A.e(mf)
            for x in s.sal[i]:
                if x.endswith(":"): A.label(x[:-1])
                else: A.e(x)
            for x in s.mem[i]: A.e(x)
            for x in s.val[i]:
                if x.endswith(":"): A.label(x[:-1])
                else: A.e(x)

def kd(A, name, nv, acc, ns=102):
    A.raw(".p2align 6")
    A.raw(f".amdhsa_kernel {name}")
    A.raw(f"  .amdhsa_next_free_vgpr {nv}")
    A.raw(f"  .amdhsa_next_free_sgpr {ns}")
    A.raw(f"  .amdhsa_accum_offset {acc}")
    A.raw("  .amdhsa_group_segment_fixed_size 0")
    A.raw("  .amdhsa_kernarg_size 64")
    A.raw("  .amdhsa_user_sgpr_count 2")
    A.raw("  .amdhsa_user_sgpr_kernarg_segment_ptr 1")
    A.raw("  .amdhsa_system_sgpr_workgroup_id_x 1")
    A.raw(".end_amdhsa_kernel")
```

```python
import sys, struct, math
sys.path.insert(0, "gen")
from asmlib import *

def f32(x): return "0x%08x" % struct.unpack("<I", struct.pack("<f", x))[0]
MF = "v_mfma_f32_16x16x32_bf16"
CSC = math.log2(math.e) / math.sqrt(128.0)
THR = 65536.0
OFRAG_BYTES = 16 * 128 * 12 * 1024
WFRAG_OFF = 32 << 20
WFRAG_BYTES = 128 * 36 * 1024

BUF1, BUF0, K0A = 32768, 90112, 147456
SLOT = 32768; NSLOT = 5
S_X, S_WQ, S_KA, S_VA, S_KB, S_VB, S_K0, S_O = 20, 24, 28, 32, 36, 40, 44, 48
S_W, S_B, S_HP, S_T0, S_T1, S_CNT = 52, 53, 54, 55, 56, 57
S_CW, S_CX, S_MW, S_MX, S_DELTA = 58, 59, 60, 61, 62
S_RD, S_WR, S_GOFF, S_THR, S_CS, S_RET = 63, 64, 65, 66, 68, 70
S_ST = 72
V_OWQ, V_OX, V_OKV, V_WA, V_XA0, V_XA1, V_KA, V_VA0, V_VA1, V_L16 = 1, 2, 3, 4, 5, 6, 7, 8, 9, 10
V_KB, V_VB0 = 11, 12
V_T = 13
V_XF = 16; V_P = 16
V_ACC = 64; V_Q = 64
V_NM = 160; V_S = 184; V_L = 232; V_E = 244; V_R = 248
A_O = 0; A_K = 192; A_V = 224

def srd(A, d, lo, hi, off_sgpr, nbytes, extra=0):
    if off_sgpr is None:
        A.e(f"s_add_u32 s{d}, s{lo}, {extra}"); A.e(f"s_addc_u32 s{d+1}, s{hi}, 0")
    else:
        A.e(f"s_add_u32 s{d}, s{lo}, s{off_sgpr}"); A.e(f"s_addc_u32 s{d+1}, s{hi}, 0")
        if extra:
            A.e(f"s_add_u32 s{d}, s{d}, {extra}"); A.e(f"s_addc_u32 s{d+1}, s{d+1}, 0")
    A.e(f"s_mov_b32 s{d+2}, {nbytes}"); A.e(f"s_mov_b32 s{d+3}, 0x20000")

class K1:
    def __init__(s, A, opt):
        s.A = A; s.opt = opt; s.pend = None; s.pairno = 0; s.stubs = []; s.nstamp = 0
    def stamp(s):
        if not s.opt.get("stamps"): return
        A = s.A
        A.e(f"s_memtime s[{S_ST+2*s.nstamp}:{S_ST+2*s.nstamp+1}]"); A.e("s_waitcnt lgkmcnt(0)"); s.nstamp += 1

    def dma_chunk(s):
        out = []
        for n in range(8):
            m0 = f"s_add_u32 m0, s{S_MW}, {(n>>2)*4096}" if n % 4 == 0 else None
            out.append((m0, f"s_add_u32 s{S_T0}, s{S_CW}, {n*32768-(n&3)*1024}",
                        f"buffer_load_dwordx4 v{V_OWQ}, s[{S_WQ}:{S_WQ+3}], s{S_T0} offen offset:{(n&3)*1024} lds"))
        for n in range(6):
            m0 = f"s_add_u32 m0, s{S_MX}, {(n>>2)*4096}" if n % 4 == 0 else None
            out.append((m0, f"s_add_u32 s{S_T0}, s{S_CX}, {n*9216-(n&3)*1024}",
                        f"buffer_load_dwordx4 v{V_OX}, s[{S_X}:{S_X+3}], s{S_T0} offen offset:{(n&3)*1024} lds"))
        return out
    def chunk_adv(s):
        return [f"s_add_u32 s{S_CW}, s{S_CW}, 524288", f"s_add_u32 s{S_CX}, s{S_CX}, 128",
                f"s_add_u32 s{S_MW}, s{S_MW}, s{S_DELTA}", f"s_add_u32 s{S_MX}, s{S_MX}, s{S_DELTA}"]
    def dma_slot(s):
        out = []
        nt = s.opt.get("kvflag", "nt")
        for r, sd in enumerate((S_KA, S_VA, S_KB, S_VB)):
            for n in range(2):
                m0 = f"s_add_u32 m0, s{S_WR}, {r*8192}" if n == 0 else None
                out.append((m0, None, f"buffer_load_dwordx4 v{V_OKV}, s[{sd}:{sd+3}], s{S_GOFF} offen offset:{n*1024} {nt} lds"))
        return out
    def slot_adv(s):
        return [f"s_add_u32 s{S_GOFF}, s{S_GOFF}, 8192", f"s_add_u32 s{S_WR}, s{S_WR}, {SLOT}",
                f"s_cmp_ge_u32 s{S_WR}, {SLOT*NSLOT}", f"s_cselect_b32 s{S_T1}, {SLOT*NSLOT}, 0", f"s_sub_u32 s{S_WR}, s{S_WR}, s{S_T1}"]
    def emit_dma_plain(s, lst):
        for m0, sal, mem in lst:
            if m0: s.A.e(m0)
            if sal: s.A.e(sal)
            s.A.e(mem)
    def place_dma(s, G, lst, gaps):
        for (m0, sal, mem), g in zip(lst, gaps):
            if m0: G.sal[g-1].append(m0)
            if sal: G.sal[g].append(sal)
            G.mem[g].append(mem)

    def q_reads(s, st, kk):
        out = []
        xa = V_XA0 if kk == 0 else V_XA1
        A = []
        for T in range(8):
            for u in range(2):
                A.append(f"ds_read_b64_tr_b16 a[{A_K+32*st+4*T+2*u}:{A_K+32*st+4*T+2*u+1}], v{V_WA} offset:{kk*8192+u*1024+(T>>1)*256+(T&1)*8}")
        B = [f"ds_read_b128 v[{V_XF+24*st+4*j}:{V_XF+24*st+4*j+3}], v{xa} offset:{j*2048}" for j in range(6)]
        return A[:2] + B + A[2:]
    def q_kstep(s, st, first=False, jmajor=False):
        G = Gaps()
        order = [(T, j) for j in range(6) for T in range(8)] if jmajor else [(T, j) for T in range(8) for j in range(6)]
        for T, j in order:
            d = v(V_ACC + (j*8+T)*4, 4)
            G.add(f"{MF} {d}, {a(A_K+32*st+4*T,4)}, {v(V_XF+24*st+4*j,4)}, {'0' if first else d}")
        return G
    def toggle_rd(s):
        return [f"v_add_u32 v{V_WA}, s{S_DELTA}, v{V_WA}", f"v_add_u32 v{V_XA0}, s{S_DELTA}, v{V_XA0}", f"v_add_u32 v{V_XA1}, s{S_DELTA}, v{V_XA1}"]
    def q_kk0(s, first=False, vm=0):
        G = s.q_kstep(0, first)
        rd = s.q_reads(1, 1)
        gaps = [g for g in range(48) if g % 3 != 2][:22]
        for r, g in zip(rd, gaps): G.mem[g].append(r)
        for i, x in enumerate(s.toggle_rd()): G.val[40+i].append(x)
        G.sal[47] += [f"s_waitcnt vmcnt({vm}) lgkmcnt(0)", "s_barrier"]
        return G
    def q_kk1(s, dma, adv):
        G = s.q_kstep(1)
        rd = s.q_reads(0, 0)
        nd = len(dma)
        dg = [1 + 2*i for i in range(nd)]
        rg = [g for g in range(48) if g not in dg][:22]
        s.place_dma(G, dma, dg)
        for r, g in zip(rd, rg): G.mem[g].append(r)
        for i, x in enumerate(adv): G.sal[38+i].append(x)
        G.sal[47].append("s_waitcnt lgkmcnt(0)")
        return G

    def Sreg(s, kt, j): return V_S + (kt*6+j)*4
    def Preg(s, p, j): return V_P + p*24 + j*4
    def Lreg(s, p, j): return V_L + p*6 + j
    def sm_group(s, G, g0, p, kt, j):
        for h in range(2):
            t = V_E + 2*(s.pairno & 1); s.pairno += 1
            S = s.Sreg(kt, j) + 2*h; g = g0 + 4*h
            G.val[g].append(f"v_exp_f32 v{t}, v{S}")
            if s.pend: G.val[g+1].append(s.pend)
            G.val[g+2].append(f"v_exp_f32 v{t+1}, v{S+1}")
            l = s.Lreg(p, j)
            src = s.Lreg(p ^ 1, j) if (kt == 0 and h == 0) else l
            G.val[g+3].append(f"v_add_f32 v{l}, v{src}, v{t}")
            G.val[g+3].append(f"v_add_f32 v{l}, v{l}, v{t+1}")
            s.pend = f"v_cvt_pk_bf16_f32 v{s.Preg(p,j)+2*kt+h}, v{t}, v{t+1}"
    def flush_pend(s, G, g):
        if s.pend: G.val[g].append(s.pend); s.pend = None
    def check(s, G, g, p, tri):
        l = s.Lreg(p, 3*tri)
        n = len(s.stubs)
        G.val[g].append(f"v_max3_f32 v{V_R}, v{l}, v{l+1}, v{l+2}")
        G.val[g+2].append(f"v_cmp_lt_f32 vcc, s{S_THR}, v{V_R}")
        G.sal[g+5].append(f"s_cbranch_vccnz L_stub{n}")
        G.sal[g+5].append(f"L_back{n}:")
        s.stubs.append((n, p, tri))
    def kv_reads(s, kt, T0, k=True):
        out = []
        if k:
            out += [f"ds_read_b128 a[{A_K+(kt*4+ks)*4}:{A_K+(kt*4+ks)*4+3}], v{V_KA} offset:{kt*4096+ks*256}" for ks in range(4)]
        for T in range(T0, T0+4):
            for u in range(2):
                out.append(f"ds_read_b64_tr_b16 a[{A_V+4*T+2*u}:{A_V+4*T+2*u+1}], v{V_VA0 if T%2==0 else V_VA1} offset:{8192+u*4096+(T>>1)*256}")
        return out
    def half(s, G, kt, pP, T0, qk=True, pv=True):
        g0 = len(G.m)
        for j in range(6):
            S = v(s.Sreg(kt, j), 4)
            for ks in range(4):
                G.add(f"{MF} {S}, {a(A_K+(kt*4+ks)*4,4)}, {v(V_Q+(j*4+ks)*4,4)}, {v(V_NM+4*j,4) if ks == 0 else S}" if qk else None)
            for T in range(T0, T0+4):
                o = a(A_O + (j*8+T)*4, 4)
                G.add(f"{MF} {o}, {a(A_V+4*T,4)}, {v(s.Preg(pP,j),4)}, {o}" if pv else None)
        return g0
    def epoch(s, p, first=False, last=False, dma=True):
        G = Gaps()
        b = s.half(G, 1, p ^ 1, 4, pv=not first)
        h = s.half(G, 0, p, 0, qk=not last)
        G.sal[b] += [f"s_waitcnt vmcnt({16 if dma else 0})", "s_barrier"]
        s.sm_group(G, b, p, 0, 5)
        for j in range(1, 6): s.sm_group(G, b + 8*j, p, 1, j-1)
        s.sm_group(G, h, p, 1, 5)
        if not last:
            for j in range(1, 6): s.sm_group(G, h + 8*j, p ^ 1, 0, j-1)
        else:
            s.flush_pend(G, h + 9)
        s.check(G, b + 32 + 2, p, 0)
        s.check(G, h + 8 + 2, p, 1)
        rB = s.kv_reads(0, 0, k=not last); rA = s.kv_reads(1, 4, k=not last)
        for i, r in enumerate(rB): G.mem[b + 1 + 4*i].append(r)
        for i, r in enumerate(rA): G.mem[h + 1 + 4*i].append(r)
        for base in (b, h):
            G.sal[base + 2].append("s_waitcnt lgkmcnt(3)")
            G.sal[base + 6].append("s_waitcnt lgkmcnt(2)")
        G.sal[h - 1].append(f"s_waitcnt lgkmcnt({0 if last else 8})")
        G.sal[h + 47].append(f"s_waitcnt lgkmcnt({0 if last else 8})")
        G.sal[h + 40] += [f"s_add_u32 s{S_RD}, s{S_RD}, {SLOT}"]
        G.sal[h + 41] += [f"s_cmp_ge_u32 s{S_RD}, {SLOT*NSLOT}"]
        G.sal[h + 42] += [f"s_cselect_b32 s{S_RD}, 0, s{S_RD}"]
        G.val[h + 45] += [f"v_add_u32 v{V_KA}, s{S_RD}, v{V_KB}"]
        G.val[h + 46] += [f"v_add_u32 v{V_VA0}, s{S_RD}, v{V_VB0}"]
        G.val[h + 47] += [f"v_xor_b32 v{V_VA1}, 32, v{V_VA0}"]
        if dma:
            dg = [b + 11 + 8*i for i in range(8)]
            s.place_dma(G, s.dma_slot(), dg)
            for i, x in enumerate(s.slot_adv()): G.sal[h + 28 + i].append(x)
        return G
    def xmax(s, r, t):
        A = s.A
        for sw in ("v_permlane16_swap_b32", "v_permlane32_swap_b32"):
            A.e(f"v_mov_b32 v{t}, v{r}"); A.e(f"{sw} v{r}, v{t}"); A.e(f"v_max_f32 v{r}, v{r}, v{t}")
    def rare(s, p, tri):
        A = s.A
        A.label(f"L_rare{p}{tri}", fresh=True)
        A.e("s_nop 15")
        r, t, f = V_R, V_R+1, V_R+2
        for j in range(3*tri, 3*tri+3):
            S = [s.Sreg(0, j)+i for i in range(4)] + [s.Sreg(1, j)+i for i in range(4)]
            A.e(f"v_max3_f32 v{r}, v{S[0]}, v{S[1]}, v{S[2]}")
            A.e(f"v_max3_f32 v{r}, v{r}, v{S[3]}, v{S[4]}")
            A.e(f"v_max3_f32 v{r}, v{r}, v{S[5]}, v{S[6]}")
            A.e(f"v_max3_f32 v{r}, v{r}, v{S[7]}, 0")
            s.xmax(r, t)
            A.e(f"v_exp_f32 v{f}, -v{r}")
            for i in range(4): A.e(f"v_sub_f32 v{V_NM+4*j+i}, v{V_NM+4*j+i}, v{r}")
            l = s.Lreg(p, j)
            A.e(f"v_mul_f32 v{l}, v{s.Lreg(p^1, j)}, v{f}")
            for x in S: A.e(f"v_sub_f32 v{x}, v{x}, v{r}")
            for x in S: A.e(f"v_exp_f32 v{x}, v{x}")
            for x in S: A.e(f"v_add_f32 v{l}, v{l}, v{x}")
            for i in range(4): A.e(f"v_cvt_pk_bf16_f32 v{s.Preg(p,j)+i}, v{S[2*i]}, v{S[2*i+1]}")
            for i in range(32):
                o = A_O + j*32 + i
                A.e(f"v_accvgpr_read_b32 v{t}, a{o}"); A.e(f"v_mul_f32 v{t}, v{t}, v{f}"); A.e(f"v_accvgpr_write_b32 a{o}, v{t}")
        A.e("s_nop 3")
        A.e(f"s_setpc_b64 s[{S_RET}:{S_RET+1}]")

    def gen(s, name):
        A = s.A; e = A.e
        A.raw(".p2align 8"); A.raw(f".globl {name}"); A.raw(f".type {name},@function"); A.label(name, fresh=True)
        e("s_cmp_ge_u32 s2, 256"); e("s_cbranch_scc1 L_k1_end")
        e("s_load_dwordx16 s[4:19], s[0:1], 0")
        s.stamp()
        e("v_lshrrev_b32 v13, 6, v0"); e(f"v_readfirstlane_b32 s{S_W}, v13")
        e("v_and_b32 v0, 63, v0")
        e(f"s_and_b32 s{S_B}, s2, 7"); e(f"s_lshl_b32 s{S_B}, s{S_B}, 1"); e(f"s_bfe_u32 s{S_T0}, s2, 0x10003"); e(f"s_or_b32 s{S_B}, s{S_B}, s{S_T0}")
        e(f"s_lshr_b32 s{S_HP}, s2, 4")
        e("v_lshrrev_b32 v14, 4, v0"); e("v_bfe_u32 v15, v0, 2, 2"); e("v_and_b32 v13, 3, v0")
        e(f"v_lshlrev_b32 v{V_L16}, 4, v0")
        e(f"v_lshlrev_b32 v{V_OWQ}, 13, v15"); e(f"v_lshl_add_u32 v{V_OWQ}, v14, 6, v{V_OWQ}"); e(f"v_lshl_add_u32 v{V_OWQ}, v13, 4, v{V_OWQ}")
        e(f"s_lshr_b32 s{S_T0}, s{S_W}, 1"); e(f"s_lshl_b32 s{S_T0}, s{S_T0}, 8")
        e(f"s_and_b32 s{S_T1}, s{S_W}, 1"); e(f"s_lshl_b32 s{S_CNT}, s{S_T1}, 18"); e(f"s_add_u32 s{S_T0}, s{S_T0}, s{S_CNT}")
        e(f"v_add_u32 v{V_OWQ}, s{S_T0}, v{V_OWQ}")
        e(f"s_lshl_b32 s{S_T1}, s{S_T1}, 1")
        e(f"v_xor_b32 v{V_OKV}, s{S_T1}, v13"); e(f"v_lshlrev_b32 v{V_OKV}, 4, v{V_OKV}")
        e(f"v_lshl_add_u32 v{V_OKV}, v15, 8, v{V_OKV}"); e(f"v_lshl_add_u32 v{V_OKV}, v14, 6, v{V_OKV}")
        e(f"s_lshl_b32 s{S_WR}, s{S_W}, 11"); e(f"v_add_u32 v{V_OKV}, s{S_WR}, v{V_OKV}")
        e(f"v_lshrrev_b32 v{V_KA}, 3, v0"); e(f"v_and_b32 v{V_VA0}, 6, v{V_KA}"); e(f"v_and_b32 v{V_VA1}, 7, v0")
        e(f"v_xor_b32 v{V_VA0}, v{V_VA0}, v{V_VA1}"); e(f"v_lshlrev_b32 v{V_VA0}, 4, v{V_VA0}")
        e(f"s_mul_i32 s{S_T0}, s{S_W}, 48"); e(f"v_add_u32 v{V_KA}, s{S_T0}, v{V_KA}")
        e(f"v_mul_u32_u24 v{V_OX}, 1152, v{V_KA}"); e(f"v_add_u32 v{V_OX}, v{V_OX}, v{V_VA0}")
        e("s_waitcnt lgkmcnt(0)")
        e(f"s_mul_i32 s{S_T0}, s{S_B}, 221184"); srd(A, S_X, 4, 5, S_T0, 221184)
        e(f"s_lshl_b32 s{S_T0}, s{S_HP}, 9"); srd(A, S_WQ, 10, 11, S_T0, 0)
        e(f"s_sub_u32 s{S_WQ+2}, {576*8192}, s{S_T0}")
        e(f"s_mov_b32 s{S_CW}, 0"); e(f"s_mov_b32 s{S_CX}, 0")
        e(f"s_lshl_b32 s{S_MW}, s{S_W}, 13"); e(f"s_add_u32 s{S_MW}, s{S_MW}, {BUF0}")
        e(f"s_mul_i32 s{S_MX}, s{S_W}, 6144"); e(f"s_add_u32 s{S_MX}, s{S_MX}, {BUF0+32768}")
        e(f"s_mov_b32 s{S_DELTA}, {BUF1-BUF0}")
        s.emit_dma_plain(s.dma_chunk())
        for x in s.chunk_adv(): e(x)
        e(f"s_sub_u32 s{S_DELTA}, 0, s{S_DELTA}")
        s.emit_dma_plain(s.dma_chunk())
        for x in s.chunk_adv(): e(x)
        e(f"s_sub_u32 s{S_DELTA}, 0, s{S_DELTA}")
        e(f"s_lshl_b32 s{S_T0}, s{S_B}, 23"); e(f"s_lshl_b32 s{S_T1}, s{S_HP}, 19"); e(f"s_add_u32 s{S_T0}, s{S_T0}, s{S_T1}")
        srd(A, S_K0, 6, 7, S_T0, 524288)
        srd(A, S_KA, 6, 7, S_T0, 262144-8192, 8192)
        srd(A, S_KB, 6, 7, S_T0, 262144-8192, 262144+8192)
        srd(A, S_VA, 8, 9, S_T0, 262144)
        srd(A, S_VB, 8, 9, S_T0, 262144, 262144)
        nt = s.opt.get("kvflag", "nt")
        for un in range(2):
            e(f"s_add_u32 m0, s{S_WR}, {K0A+un*8192}"); e(f"s_mov_b32 s{S_T0}, {un*262144}")
            for n in range(2): e(f"buffer_load_dwordx4 v{V_OKV}, s[{S_K0}:{S_K0+3}], s{S_T0} offen offset:{n*1024} {nt} lds")
        e(f"s_mov_b32 s{S_GOFF}, 0")
        s.emit_dma_plain(s.dma_slot())
        for x in s.slot_adv(): e(x)
        e(f"s_mul_i32 s{S_T0}, s{S_B}, {128*12*1024}"); srd(A, S_O, 18, 19, S_T0, 128*12*1024)
        e(f"s_mov_b32 s{S_THR}, {f32(THR)}"); e(f"s_mov_b32 s{S_CS}, {f32(CSC)}"); e(f"s_mov_b32 s{S_CS+1}, {f32(CSC)}")
        e(f"v_lshlrev_b32 v{V_WA}, 11, v14"); e(f"v_lshl_add_u32 v{V_WA}, v15, 6, v{V_WA}"); e(f"v_lshl_add_u32 v{V_WA}, v13, 4, v{V_WA}")
        e(f"s_lshr_b32 s{S_T0}, s{S_W}, 1"); e(f"s_lshl_b32 s{S_T0}, s{S_T0}, 14"); e(f"s_add_u32 s{S_T1}, s{S_T0}, {BUF0}")
        e(f"v_add_u32 v{V_WA}, s{S_T1}, v{V_WA}")
        e(f"v_and_b32 v{V_XA1}, 15, v0"); e(f"v_and_b32 v{V_XA0}, 6, v0"); e(f"v_xor_b32 v{V_XA0}, v{V_XA0}, v14")
        e(f"v_lshlrev_b32 v{V_XA0}, 4, v{V_XA0}"); e(f"v_lshl_add_u32 v{V_XA0}, v{V_XA1}, 7, v{V_XA0}")
        e(f"s_and_b32 s{S_T1}, s{S_W}, 1"); e(f"s_mul_i32 s{S_T1}, s{S_T1}, 12288"); e(f"s_add_u32 s{S_T1}, s{S_T1}, {BUF0+32768}")
        e(f"v_add_u32 v{V_XA0}, s{S_T1}, v{V_XA0}"); e(f"v_xor_b32 v{V_XA1}, 64, v{V_XA0}")
        e(f"v_and_b32 v{V_KB}, 1, v15"); e(f"v_lshlrev_b32 v{V_KB}, 1, v{V_KB}")
        e(f"v_lshrrev_b32 v{V_KA}, 1, v15"); e(f"v_or_b32 v{V_KA}, v{V_KA}, v{V_KB}")
        e(f"v_xor_b32 v{V_KB}, v{V_KB}, v14"); e(f"v_lshlrev_b32 v{V_KB}, 4, v{V_KB}")
        e(f"v_lshl_add_u32 v{V_KB}, v{V_KA}, 10, v{V_KB}"); e(f"v_lshl_add_u32 v{V_KB}, v13, 6, v{V_KB}")
        e(f"s_lshr_b32 s{S_T1}, s{S_T0}, 1"); e(f"s_add_u32 s{S_T1}, s{S_T1}, {K0A}"); e(f"v_add_u32 v{V_KA}, s{S_T1}, v{V_KB}")
        e(f"v_add_u32 v{V_KB}, s{S_T0}, v{V_KB}")
        e(f"v_and_b32 v{V_VA1}, 1, v14"); e(f"v_lshrrev_b32 v{V_VB0}, 1, v14"); e(f"v_lshl_add_u32 v{V_VB0}, v{V_VA1}, 1, v{V_VB0}")
        e(f"v_lshlrev_b32 v{V_VB0}, 10, v{V_VB0}"); e(f"v_lshl_add_u32 v{V_VB0}, v15, 6, v{V_VB0}")
        e(f"v_lshl_add_u32 v{V_VB0}, v{V_VA1}, 5, v{V_VB0}"); e(f"v_lshl_add_u32 v{V_VB0}, v13, 3, v{V_VB0}")
        e(f"v_add_u32 v{V_VB0}, s{S_T0}, v{V_VB0}")
        e(f"v_mov_b32 v{V_VA0}, v{V_VB0}"); e(f"v_xor_b32 v{V_VA1}, 32, v{V_VB0}")
        e(f"s_mov_b32 s{S_RD}, 0")
        for i in range(4): e(f"v_mov_b32 v{V_XF+i}, 0")
        for i in range(12): e(f"v_mfma_f32_32x32x16_bf16 a[{16*i}:{16*i+15}], {v(V_XF,4)}, {v(V_XF,4)}, 0")
        e("s_waitcnt vmcnt(26)"); e("s_barrier")
        s.stamp()
        for r in s.q_reads(0, 0): e(r)
        e("s_waitcnt lgkmcnt(0)")
        s.q_kk0(first=True, vm=12).emit(A)
        e(f"s_mov_b32 s{S_CNT}, 7")
        A.raw(".p2align 6")
        A.label("L_qloop"); p0 = A.pos()
        s.q_kk1(s.dma_chunk(), s.chunk_adv() + [f"s_sub_u32 s{S_DELTA}, 0, s{S_DELTA}"]).emit(A)
        G = s.q_kk0(vm=0)
        G.sal[44].append(f"s_sub_u32 s{S_CNT}, s{S_CNT}, 1"); G.sal[45].append(f"s_cmp_lg_u32 s{S_CNT}, 0")
        G.emit(A)
        e("s_cbranch_scc1 L_qloop"); A.check_loop(p0, A.pos())
        s.q_kk1(s.dma_slot(), s.slot_adv()).emit(A)
        s.q_kk0(vm=8).emit(A)
        G = s.q_kstep(1, jmajor=True)
        s.place_dma(G, s.dma_slot(), [1 + 2*i for i in range(8)])
        for i, x in enumerate(s.slot_adv()): G.sal[20+i].append(x)
        k0 = [f"ds_read_b128 a[{A_K+(kt*4+ks)*4}:{A_K+(kt*4+ks)*4+3}], v{V_KA} offset:{kt*4096+ks*256}" for kt in range(2) for ks in range(4)]
        for i, r in enumerate(k0): G.mem[2*i].append(r)
        G.emit(A)
        s.stamp()
        for i in range(24):
            for h in range(4): e(f"v_pk_mul_f32 {v(V_ACC+8*i+2*h,2)}, {v(V_ACC+8*i+2*h,2)}, s[{S_CS}:{S_CS+1}]")
            for h in range(4): e(f"v_cvt_pk_bf16_f32 v{V_Q+4*i+h}, v{V_ACC+8*i+2*h}, v{V_ACC+8*i+2*h+1}")
        e(f"v_mov_b32 v{V_KA}, v{V_KB}")
        e("s_waitcnt lgkmcnt(0)")
        for j in range(6):
            S = v(s.Sreg(0, j), 4)
            for ks in range(4): e(f"{MF} {S}, {a(A_K+ks*4,4)}, {v(V_Q+(j*4+ks)*4,4)}, {'0' if ks == 0 else S}")
        for j in range(6):
            S = s.Sreg(0, j); r = V_R
            e(f"v_mov_b32 v{s.Lreg(1,j)}, 0")
            e(f"v_max3_f32 v{r}, v{S}, v{S+1}, v{S+2}"); e(f"v_max_f32 v{r}, v{r}, v{S+3}")
            s.xmax(r, V_R+1)
            for i in range(4): e(f"v_sub_f32 v{V_NM+4*j+i}, 0, v{r}")
            for i in range(4): e(f"v_sub_f32 v{S+i}, v{S+i}, v{r}")
        G = Gaps()
        for i in range(40): G.add(None)
        for j in range(5): s.sm_group(G, 8*j, 0, 0, j)
        G.emit(A)
        s.epoch(0, first=True).emit(A)
        s.stamp()
        e(f"s_mov_b32 s{S_CNT}, 15")
        A.raw(".p2align 6")
        A.label("L_aloop"); p0 = A.pos(); pend0 = s.pend
        s.epoch(1).emit(A)
        G = s.epoch(0)
        G.sal[92].append(f"s_sub_u32 s{S_CNT}, s{S_CNT}, 1"); G.sal[93].append(f"s_cmp_lg_u32 s{S_CNT}, 0")
        G.emit(A)
        e("s_cbranch_scc1 L_aloop"); A.check_loop(p0, A.pos()); assert pend0 == s.pend
        s.stamp()
        s.epoch(1, last=True, dma=False).emit(A)
        e("s_waitcnt lgkmcnt(0)")
        G = Gaps(); s.half(G, 1, 1, 4, qk=False); G.emit(A)
        s.stamp()
        for j in range(6):
            l = s.Lreg(1, j); t = V_R
            for sw in ("v_permlane16_swap_b32", "v_permlane32_swap_b32"):
                e(f"v_mov_b32 v{t}, v{l}"); e(f"{sw} v{l}, v{t}"); e(f"v_add_f32 v{l}, v{l}, v{t}")
            e(f"v_rcp_f32 v{l}, v{l}")
        e(f"s_lshr_b32 s{S_T0}, s{S_W}, 1"); e(f"s_lshl_b32 s{S_T1}, s{S_HP}, 1"); e(f"s_add_u32 s{S_T0}, s{S_T0}, s{S_T1}")
        e(f"s_mul_i32 s{S_T0}, s{S_T0}, {48*1024}"); e(f"s_and_b32 s{S_T1}, s{S_W}, 1"); e(f"s_mul_i32 s{S_T1}, s{S_T1}, 6144")
        e(f"s_add_u32 s{S_T0}, s{S_T0}, s{S_T1}")
        n = 0
        for j in range(6):
            l = s.Lreg(1, j)
            for k in range(4):
                t = V_S + 8*(n % 4); d = V_P + 4*(n % 8); n += 1
                for i in range(8): e(f"v_accvgpr_read_b32 v{t+i}, a{A_O+j*32+k*8+i}")
                for i in range(8): e(f"v_mul_f32 v{t+i}, v{t+i}, v{l}")
                for i in range(4): e(f"v_cvt_pk_bf16_f32 v{d+i}, v{t+2*i}, v{t+2*i+1}")
                e(f"s_add_u32 s{S_T1}, s{S_T0}, {k*12288+j*1024}")
                if s.opt.get("dumpq"): d = V_Q + (j*4+k)*4
                e(f"buffer_store_dwordx4 {v(d,4)}, v{V_L16}, s[{S_O}:{S_O+3}], s{S_T1} offen")
        if s.opt.get("stamps"):
            e("s_waitcnt vmcnt(0)")
            s.stamp()
            e("s_cmp_lg_u32 s2, 0"); e("s_cbranch_scc1 L_k1_end"); e(f"s_cmp_lg_u32 s{S_W}, 0"); e("s_cbranch_scc1 L_k1_end")
            e("v_mov_b32 v13, 0")
            for i in range(1, s.nstamp):
                e(f"s_sub_u32 s{S_T0}, s{S_ST+2*i}, s{S_ST}"); e(f"v_mov_b32 v14, s{S_T0}")
                e(f"global_store_dword v13, v14, s[16:17] offset:{4*i}")
        A.label("L_k1_end"); e("s_endpgm")
        for n, p, tri in s.stubs:
            A.label(f"L_stub{n}", fresh=True)
            e(f"s_call_b64 s[{S_RET}:{S_RET+1}], L_rare{p}{tri}"); e(f"s_branch L_back{n}")
        for p in range(2):
            for tri in range(2): s.rare(p, tri)

def k0(A, name):
    e = A.e
    A.raw(".p2align 8"); A.raw(f".globl {name}"); A.raw(f".type {name},@function"); A.label(name, fresh=True)
    e("s_cmp_ge_u32 s2, 256"); e("s_cbranch_scc1 L_k0_end")
    e("s_load_dwordx2 s[4:5], s[0:1], 32"); e("s_load_dwordx2 s[6:7], s[0:1], 56")
    e("v_lshrrev_b32 v1, 6, v0"); e("v_readfirstlane_b32 s20, v1"); e("v_and_b32 v0, 63, v0")
    e("v_lshrrev_b32 v1, 4, v0"); e("v_mul_u32_u24 v1, 4608, v1"); e("v_and_b32 v2, 15, v0"); e("v_lshl_add_u32 v1, v2, 1, v1")
    e("v_lshlrev_b32 v2, 4, v0")
    e("s_waitcnt lgkmcnt(0)")
    srd(A, 8, 4, 5, None, 4096*1152); srd(A, 12, 6, 7, None, WFRAG_BYTES, WFRAG_OFF)
    e("s_lshr_b32 s21, s2, 1"); e("s_and_b32 s22, s2, 1"); e("s_mul_i32 s22, s22, 18"); e("s_add_u32 s22, s22, s20")
    e("s_mul_i32 s23, s21, 36864"); e("s_lshl_b32 s24, s22, 5"); e("s_add_u32 s23, s23, s24")
    e("s_mul_i32 s25, s21, 36"); e("s_add_u32 s25, s25, s22"); e("s_lshl_b32 s25, s25, 10")
    for n in range(5):
        if n == 4: e("s_cmp_ge_u32 s20, 2"); e("s_cbranch_scc1 L_k0_end")
        for j in range(8):
            if j % 4 == 0: e(f"s_add_u32 s26, s23, {n*128+(j>>2)*18432}")
            e(f"buffer_load_ushort v{24+j}, v1, s[8:11], s26 offen offset:{(j&3)*1152}")
        e("s_waitcnt vmcnt(0)")
        for j in range(4): e(f"v_lshl_or_b32 v{4+4*n+j}, v{25+2*j}, 16, v{24+2*j}")
        e(f"s_add_u32 s26, s25, {n*4096}")
        e(f"buffer_store_dwordx4 v[{4+4*n}:{7+4*n}], v2, s[12:15], s26 offen")
    A.label("L_k0_end"); e("s_endpgm")

def k2(A, name, opt):
    e = A.e
    A.raw(".p2align 8"); A.raw(f".globl {name}"); A.raw(f".type {name},@function"); A.label(name, fresh=True)
    e("s_cmp_ge_u32 s2, 256"); e("s_cbranch_scc1 L_k2_end")
    e("s_load_dwordx2 s[4:5], s[0:1], 40"); e("s_load_dwordx2 s[6:7], s[0:1], 56")
    e("v_lshrrev_b32 v1, 6, v0"); e("v_readfirstlane_b32 s20, v1"); e("v_and_b32 v0, 63, v0"); e("v_lshlrev_b32 v2, 4, v0")
    e("s_and_b32 s21, s2, 7"); e("s_lshl_b32 s21, s21, 1"); e("s_bfe_u32 s22, s2, 0x10003"); e("s_or_b32 s21, s21, s22")
    e("s_bfe_u32 s22, s2, 0x10004"); e("s_bfe_u32 s23, s2, 0x20005"); e("s_bfe_u32 s24, s2, 0x10007")
    e("s_waitcnt lgkmcnt(0)")
    e(f"s_mul_i32 s25, s21, {128*12*1024}"); srd(A, 8, 6, 7, 25, 128*12*1024)
    srd(A, 12, 6, 7, None, WFRAG_BYTES, WFRAG_OFF)
    srd(A, 16, 4, 5, None, 3072*1152)
    e(f"s_mul_i32 s30, s20, {32*12288}"); e("s_mul_i32 s25, s22, 6144"); e("s_add_u32 s30, s30, s25")
    e("s_mul_i32 s25, s24, 3072"); e("s_add_u32 s31, s30, 3072"); e("s_sub_u32 s31, s31, s25"); e("s_add_u32 s30, s30, s25")
    e(f"s_mul_i32 s32, s20, {32*36864}"); e("s_mul_i32 s25, s23, 9216"); e("s_add_u32 s32, s32, s25")
    e("s_add_u32 s33, s32, 4096"); e("s_mul_i32 s25, s24, 5120"); e("s_add_u32 s32, s32, s25")
    F = 16
    def loads(buf):
        base = F + 44*buf; out = []
        for n in range(3): out.append(f"buffer_load_dwordx4 {v(base+4*n,4)}, v2, s[8:11], s30 offen offset:{n*1024}")
        for n in range(4): out.append(f"buffer_load_dwordx4 {v(base+24+4*n,4)}, v2, s[12:15], s32 offen offset:{n*1024}")
        for n in range(3): out.append(f"buffer_load_dwordx4 {v(base+12+4*n,4)}, v2, s[8:11], s31 offen offset:{n*1024}")
        out.append(f"buffer_load_dwordx4 {v(base+40,4)}, v2, s[12:15], s33 offen")
        return out
    adv = ["s_add_u32 s30, s30, 12288", "s_add_u32 s31, s31, 12288", "s_add_u32 s32, s32, 36864", "s_add_u32 s33, s33, 36864"]
    for b in range(3):
        for x in loads(b): e(x)
        for x in adv: e(x)
    for i in range(4): e(f"v_mov_b32 v{4+i}, 0")
    for i in range(7): e(f"v_mfma_f32_32x32x16_bf16 a[{16*i}:{16*i+15}], v[4:7], v[4:7], 0")
    def kstep(buf, ld):
        G = Gaps(); base = F + 44*buf
        for bq in range(6):
            for ai in range(5):
                if ai == 4 and bq >= 3: continue
                n = bq*4+ai if ai < 4 else 24+bq
                G.add(f"{MF} {a(4*n,4)}, {v(base+24+4*ai,4)}, {v(base+4*bq,4)}, {a(4*n,4)}")
        if ld:
            for i, x in enumerate(loads((buf+3) % 4)): G.mem[2*i].append(x)
            for i, x in enumerate(adv): G.sal[22+i].append(x)
        return G
    e("s_mov_b32 s26, 7")
    e("s_nop 7")
    A.raw(".p2align 6"); A.label("L_k2loop"); p0 = A.pos()
    for b in range(4):
        e("s_waitcnt vmcnt(22)")
        G = kstep(b, True)
        if b == 3: G.sal[20].append("s_sub_u32 s26, s26, 1"); G.sal[26].append("s_cmp_lg_u32 s26, 0")
        G.emit(A)
    e("s_cbranch_scc1 L_k2loop"); A.check_loop(p0, A.pos())
    e("s_waitcnt vmcnt(22)"); kstep(0, True).emit(A)
    e("s_waitcnt vmcnt(22)"); kstep(1, False).emit(A)
    e("s_waitcnt vmcnt(11)"); kstep(2, False).emit(A)
    e("s_waitcnt vmcnt(0)"); kstep(3, False).emit(A)
    e(f"s_mul_i32 s25, s20, {27*1024}"); e("v_add_u32 v3, s25, v2")
    for n in range(27): e(f"ds_write_b128 v3, {a(4*n,4)} offset:{n*1024}")
    e("s_lshl_b32 s25, s20, 10"); e("v_add_u32 v3, s25, v2"); e(f"v_add_u32 v4, {54*1024}, v3")
    e("v_and_b32 v5, 15, v0"); e("v_mul_u32_u24 v5, 1152, v5"); e("v_lshrrev_b32 v6, 4, v0"); e("v_lshl_add_u32 v5, v6, 3, v5")
    e("s_mul_i32 s27, s21, 12"); e("s_mul_i32 s25, s22, 6"); e("s_add_u32 s27, s27, s25"); e("s_mul_i32 s27, s27, 18432")
    e("s_mul_i32 s28, s23, 288"); e("s_add_u32 s27, s27, s28")
    e(f"s_mul_i32 s28, s24, {3*18432}")
    e("s_add_u32 s34, s27, s28")
    e(f"s_add_u32 s35, s27, {3*18432}"); e("s_sub_u32 s35, s35, s28")
    e("s_mul_i32 s28, s20, 18432"); e("s_add_u32 s36, s34, s28"); e("s_add_u32 s36, s36, 128")
    e("s_mul_i32 s28, s24, 160"); e("s_lshl_b32 s25, s20, 5"); e("s_add_u32 s28, s28, s25")
    e("s_add_u32 s34, s34, s28"); e("s_add_u32 s35, s35, s28")
    e("s_waitcnt lgkmcnt(0)"); e("s_barrier")
    for i in range(7):
        for w in range(4):
            e(f"ds_read_b128 {v(F+16*i+4*w,4)}, v{3 if w < 2 else 4} offset:{(w%2)*27*1024+i*4096}")
    for i in range(7):
        if i == 6: e("s_cmp_ge_u32 s20, 3"); e("s_cbranch_scc1 L_k2_end")
        e(f"s_waitcnt lgkmcnt({min(15, 4*(6-i))})")
        b = F + 16*i
        for r in range(4): e(f"v_add_f32 v{b+r}, v{b+r}, v{b+4+r}")
        for r in range(4): e(f"v_add_f32 v{b+8+r}, v{b+8+r}, v{b+12+r}")
        for r in range(4): e(f"v_add_f32 v{b+r}, v{b+r}, v{b+8+r}")
        e(f"v_cvt_pk_bf16_f32 v{b}, v{b}, v{b+1}"); e(f"v_cvt_pk_bf16_f32 v{b+1}, v{b+2}, v{b+3}")
        if i < 6: e(f"s_add_u32 s25, s{34 if i < 3 else 35}, {(i%3)*18432}")
        e(f"buffer_store_dwordx2 {v(b,2)}, v5, s[16:19], s{25 if i < 6 else 36} offen")
    A.label("L_k2_end"); e("s_endpgm")

def build(opt=None):
    opt = opt or {}
    A = Asm()
    lst = opt.get("launch", ["k0", "k1", "k2"])
    hdr = open("standalone__mha_block_cached__near_ridge.s.ref").read().split("\n")[:9]
    for l in hdr: A.raw(l)
    ldsz = {"k0": 0, "k1": 163840, "k2": 27*4*1024 + 4096}
    for k in lst: A.raw(f"; @launch kernel=mha_{k}_kernel grid=(256,1,1) block=(256,1,1) lds={ldsz[k]}")
    A.raw('.amdgcn_target "amdgcn-amd-amdhsa--gfx950"'); A.raw(".text")
    k0(A, "mha_k0_kernel")
    K1(A, opt).gen("mha_k1_kernel")
    k2(A, "mha_k2_kernel", opt)
    A.raw('.section .rodata,"a"')
    kd(A, "mha_k0_kernel", 32, 32, 40)
    kd(A, "mha_k1_kernel", 512, 256, 96)
    kd(A, "mha_k2_kernel", 304, 192, 48)
    return A

if __name__ == "__main__":
    import json
    out = sys.argv[1]
    opt = json.loads(sys.argv[2]) if len(sys.argv) > 2 else {}
    A = build(opt)
    open(out, "w").write(A.text())
    print("instrs", len(A.L), "auto nops", A.nops)
```
